```python
import torch

def _softmax(x, axis=-1):
    return torch.softmax(x, dim=axis)
def _gelu(x):
    return torch.nn.functional.gelu(x, approximate="tanh")
def _silu(x):
    return torch.nn.functional.silu(x)
def _sigmoid(x):
    return torch.sigmoid(x)
def _layernorm(x, axis=-1, eps=1e-5):
    m = x.mean(dim=axis, keepdim=True)
    v = x.var(dim=axis, keepdim=True, unbiased=False)
    return (x - m) / torch.sqrt(v + eps)
def _scatter_add(tgt, idx, src, axis=0):
    return tgt.clone().index_add_(axis, idx, src)
def _segment_sum(src, seg, n):
    out = torch.zeros((n,) + src.shape[1:], dtype=src.dtype)
    return out.index_add_(0, seg, src)
def _pad(x, pw):
    flat = tuple(v for pair in reversed(pw) for v in pair)
    return torch.nn.functional.pad(x, flat)

kernel_name = 'gated_mix__sliding_local_dilated__compressed_kv_cla__prompt'

def setup_inputs():

    _w = (lambda a: (lambda t: t.to(torch.bfloat16) if t.is_floating_point() else t)(torch.as_tensor(a)))
    def _A_setup():
        B, S, D = 1, 2048, 512
        return {
            "x": _w((lambda *s: torch.randn(*s, dtype=torch.bfloat16) * 0.05)(B, S, D)),
            "wqkv": _w((lambda *s: torch.randn(*s, dtype=torch.bfloat16) * 1.6)(D, 3 * D)),
            "wo": _w((lambda *s: torch.randn(*s, dtype=torch.bfloat16) * 0.05)(D, D)),
        }
    _A_in = _A_setup()

    def _B_setup():
        B, H, Sq, Sk, D, M = 1, 32, 2048, 2048, 128, 512
        Dc = 4 * D
        return {
            "x": _w((lambda *s: torch.randn(*s, dtype=torch.bfloat16) * 0.05)(B, Sq, M)),
            "c_kv": _w((lambda *s: torch.randn(*s, dtype=torch.bfloat16) * 1.6)(B, Sk, Dc)),
            "w_q": _w((lambda *s: torch.randn(*s, dtype=torch.bfloat16) * 6.4)(M, H, D) * (M ** -0.5)),
            "w_uk": _w((lambda *s: torch.randn(*s, dtype=torch.bfloat16) * 6.4)(Dc, H, D) * (Dc ** -0.5)),
            "w_uv": _w((lambda *s: torch.randn(*s, dtype=torch.bfloat16) * 1.6)(Dc, H, D) * (Dc ** -0.5)),
            "w_o": _w((lambda *s: torch.randn(*s, dtype=torch.bfloat16) * 1.6)(H, D, M) * ((H * D) ** -0.5)),
        }
    _B_in = _B_setup()

    return {
        "A_x": _A_in["x"],
        "A_wqkv": _A_in["wqkv"],
        "A_wo": _A_in["wo"],
        "B_x": _B_in["x"],
        "B_c_kv": _B_in["c_kv"],
        "B_w_q": _B_in["w_q"],
        "B_w_uk": _B_in["w_uk"],
        "B_w_uv": _B_in["w_uv"],
        "B_w_o": _B_in["w_o"],
        "gate_w": _w((lambda *s: torch.randn(*s, dtype=torch.bfloat16) * 0.05)(512) * 16.0),
    }

def reference(A_x, A_wqkv, A_wo, B_x, B_c_kv, B_w_q, B_w_uk, B_w_uv, B_w_o, gate_w):
    def _A_ref(x, wqkv, wo):
        B, S, D = x.shape
        H = 32; Dh = D // H
        W, dil = 8, 2
        qkv = (lambda x, *d: x.permute(*d))((x @ wqkv).reshape(B, S, 3, H, Dh), 2, 0, 3, 1, 4)
        q, k, v = qkv[0], qkv[1], qkv[2]
        scale = Dh ** -0.5
        pos = torch.arange(S)
        off = torch.arange(W) * dil
        idx = pos[:, None] - off[None, :]
        mask = idx >= 0
        idx_c = torch.where(mask, idx, 0).reshape(-1)
        kg = k[:, :, idx_c, :].reshape(B, H, S, W, Dh)
        vg = v[:, :, idx_c, :].reshape(B, H, S, W, Dh)
        logits = torch.einsum("bhsd,bhswd->bhsw", q, kg) * scale
        logits = torch.where(mask[None, None, :, :], logits, -1e9)
        attn = _softmax(logits, axis=-1)
        o = torch.einsum("bhsw,bhswd->bhsd", attn, vg)
        return (lambda x, *d: x.permute(*d))(o, 0, 2, 1, 3).reshape(B, S, D) @ wo

    def _B_ref(x, c_kv, w_q, w_uk, w_uv, w_o):
        B, Sq, M = x.shape[0], x.shape[1], x.shape[2]
        Sk = c_kv.shape[1]
        H, D = w_q.shape[1], w_q.shape[2]
        q = torch.einsum("bqm,mhd->bhqd", x, w_q)
        k = torch.einsum("bkc,chd->bhkd", c_kv, w_uk)
        v = torch.einsum("bkc,chd->bhkd", c_kv, w_uv)
        scores = torch.einsum("bhqd,bhkd->bhqk", q, k) * (D ** -0.5)
        off = Sk - Sq
        qi = torch.arange(Sq)[:, None]
        kj = torch.arange(Sk)[None, :]
        cmask = kj <= (qi + off)
        scores = torch.where(cmask[None, None], scores, -1e9)
        p = _softmax(scores, axis=-1)
        ctx = torch.einsum("bhqk,bhkd->bhqd", p, v)
        return torch.einsum("bhqd,hdm->bqm", ctx, w_o)

    x = A_x
    g = _sigmoid((x * gate_w).sum(-1, keepdims=True))
    a = _A_ref(x, A_wqkv, A_wo)
    b = _B_ref(x, B_c_kv, B_w_q, B_w_uk, B_w_uv, B_w_o)
    return g * a + (1 - g) * b
```

```python
import re


def R(p, i, n=4):
    return f"{p}{i}" if n == 1 else f"{p}[{i}:{i+n-1}]"


class Asm:
    def __init__(self):
        self.lines = []

    def __call__(self, s):
        if isinstance(s, (list, tuple)):
            for x in s:
                self(x)
            return
        for ln in s.split("\n"):
            ln = ln.strip()
            if ln:
                self.lines.append(ln)

    def text(self):
        out = []
        for ln in self.lines:
            if ln.endswith(":") or ln.startswith(".") or ln.startswith(";"):
                out.append(ln)
            else:
                out.append("    " + ln)
        return "\n".join(out) + "\n"


_REG = re.compile(r"^(-|\|)?([vas])(\d+)\|?$|^(-|\|)?([vas])\[(\d+):(\d+)\]\|?$")
TRANS = ("v_exp_", "v_log_", "v_rcp_", "v_rsq_", "v_sqrt_", "v_sin_", "v_cos_")


def regs_of(tok):
    tok = tok.strip()
    if tok in ("vcc",):
        return [("s", "vcc")]
    if tok in ("exec",):
        return [("s", "exec")]
    if tok == "m0":
        return [("s", "m0")]
    m = _REG.match(tok)
    if not m:
        return []
    if m.group(2):
        return [(m.group(2), int(m.group(3)))]
    return [(m.group(5), k) for k in range(int(m.group(6)), int(m.group(7)) + 1)]


class Ins:
    __slots__ = ("text", "op", "kind", "w", "r", "a", "b", "c", "tgt", "nop", "passes", "vm", "lg", "wide")

    def __init__(self, text):
        self.text = text
        t = text.split(";")[0].strip()
        parts = t.split(None, 1)
        self.op = op = parts[0]
        rest = parts[1] if len(parts) > 1 else ""
        toks = [x.strip() for x in rest.split(",")]
        ops = []
        mods = []
        for i, x in enumerate(toks):
            sp = x.split()
            if not sp:
                continue
            ops.append(sp[0])
            mods += sp[1:]
        self.w, self.r = [], []
        self.a = self.b = self.c = []
        self.tgt = None
        self.nop = 1
        self.passes = 0
        self.vm = self.lg = None
        self.wide = False
        g = lambda i: regs_of(ops[i]) if i < len(ops) else []
        if op.startswith("v_mfma"):
            self.kind = "mfma"
            self.w = g(0); self.a = g(1); self.b = g(2); self.c = g(3)
            self.r = self.a + self.b + self.c
            self.passes = 8 if "32x32" in op else 4
        elif op.startswith("v_"):
            self.kind = "trans" if op.startswith(TRANS) else "valu"
            if op.startswith("v_permlane") and "swap" in op:
                self.kind = "perm"
                self.w = g(0) + g(1); self.r = g(0) + g(1)
            elif op.startswith("v_readfirstlane") or op.startswith("v_readlane"):
                self.kind = "rdlane"
                self.w = g(0); self.r = g(1) + g(2)
            elif op.startswith("v_cmp"):
                self.w = g(0)
                for i in range(1, len(ops)): self.r += g(i)
            elif "_co_" in op:
                self.w = g(0) + g(1)
                for i in range(2, len(ops)): self.r += g(i)
            elif op == "v_nop":
                pass
            else:
                self.w = g(0)
                for i in range(1, len(ops)): self.r += g(i)
                if op.startswith("v_fmac") or op.startswith("v_pk_fmac"):
                    self.r += g(0)
            if any(m.startswith(("row_", "quad_perm", "wave_")) for m in mods):
                self.kind = "dpp"
        elif op.startswith("ds_read") or op.startswith("ds_bpermute") or op.startswith("ds_swizzle"):
            self.kind = "dsr"
            self.w = g(0)
            for i in range(1, len(ops)): self.r += g(i)
        elif op.startswith("ds_"):
            self.kind = "dsw"
            for i in range(0, len(ops)): self.r += g(i)
        elif op.startswith("buffer_load") or op.startswith("global_load"):
            if "lds" in mods or "_lds_" in op:
                self.kind = "dma"
                for i in range(0, len(ops)): self.r += g(i)
                self.r += [("s", "m0")]
            else:
                self.kind = "vld"
                self.w = g(0)
                for i in range(1, len(ops)): self.r += g(i)
        elif op.startswith("buffer_store") or op.startswith("global_store"):
            self.kind = "vst"
            for i in range(0, len(ops)): self.r += g(i)
            self.wide = op.endswith("x4") or op.endswith("x3")
            self.a = g(0) if op.startswith("buffer") else g(1)
        elif op.startswith("buffer_atomic") or op.startswith("global_atomic"):
            self.kind = "vst"
            for i in range(0, len(ops)): self.r += g(i)
            if "sc0" in mods:
                self.kind = "vld"; self.w = g(0)
        elif op.startswith("buffer_inv") or op.startswith("buffer_wbl2"):
            self.kind = "vst"
        elif op == "s_nop":
            self.kind = "salu"; self.nop = int(ops[0], 0) + 1
        elif op == "s_waitcnt":
            self.kind = "wait"
            m = re.search(r"vmcnt\((\d+)\)", rest); self.vm = int(m.group(1)) if m else None
            m = re.search(r"lgkmcnt\((\d+)\)", rest); self.lg = int(m.group(1)) if m else None
        elif op.startswith("s_cbranch") or op == "s_branch":
            self.kind = "br"; self.tgt = ops[0]
        elif op == "s_endpgm":
            self.kind = "end"
        elif op.startswith("s_load") or op.startswith("s_memtime") or op.startswith("s_memrealtime"):
            self.kind = "smem"; self.w = g(0)
            for i in range(1, len(ops)): self.r += g(i)
        elif op.startswith("s_"):
            self.kind = "salu"
            if not op.startswith(("s_cmp", "s_barrier", "s_setprio", "s_sleep", "s_bitcmp")):
                self.w = g(0)
                for i in range(1, len(ops)): self.r += g(i)
                if "saveexec" in op:
                    self.w += [("s", "exec")]
            else:
                for i in range(0, len(ops)): self.r += g(i)
        else:
            raise ValueError("unknown instruction: " + text)
        if op.startswith("v_cndmask") and len(ops) == 3:
            self.r += [("s", "vcc")]


VALU_KINDS = ("valu", "trans", "perm", "rdlane", "dpp")
VMEM_KINDS = ("vld", "vst", "dma")


def required(p, c):
    need = 0
    pw = set(p.w)
    if p.kind in VALU_KINDS:
        pv = {x for x in pw if x[0] in "va"}
        ps = {x for x in pw if x[0] == "s"}
        if c.kind == "mfma" and pv & set(c.r): need = max(need, 2)
        if c.kind in ("perm", "dpp") and pv & set(c.r): need = max(need, 2)
        if c.kind == "rdlane" and pv & set(c.r): need = max(need, 1)
        if p.kind == "trans" and c.kind in VALU_KINDS and c.kind != "trans" and pv & set(c.r): need = max(need, 1)
        if ps and c.kind in VMEM_KINDS and ps & set(c.r): need = max(need, 5)
        if ps and c.kind in VALU_KINDS and ps & set(c.r): need = max(need, 4 if c.kind == "rdlane" else 2)
    if p.kind == "salu" and ("s", "m0") in pw and c.kind == "dma": need = max(need, 1)
    if p.kind == "mfma":
        n = p.passes
        big = {4: 8, 8: 12}[n]; mid = {4: 6, 8: 10}[n]; war = {4: 3, 8: 7}[n]
        if c.kind == "mfma":
            if pw & (set(c.a) | set(c.b)): need = max(need, big)
            if pw & set(c.c) and not (c.c == p.w and c.passes == p.passes): need = max(need, mid)
        elif c.kind in VALU_KINDS:
            if pw & (set(c.r) | set(c.w)): need = max(need, big)
            if set(p.c) & set(c.w): need = max(need, war)
        elif c.kind in VMEM_KINDS + ("dsr", "dsw"):
            if pw & (set(c.r) | set(c.w)): need = max(need, big)
    if p.kind == "vst" and p.wide:
        if set(p.a) & set(c.w): need = max(need, 2)
    return need


def parse(lines):
    ins, labels = [], {}
    for ln in lines:
        if ln.startswith(";") or ln.startswith("."):
            continue
        if ln.endswith(":"):
            labels[ln[:-1]] = len(ins)
            continue
        ins.append(Ins(ln))
    return ins, labels


def check_hazards(lines, verbose=True):
    ins, labels = parse(lines)
    errs = []
    n = len(ins)
    for i, p in enumerate(ins):
        if p.kind not in VALU_KINDS + ("mfma", "salu", "vst"):
            continue
        if p.kind == "salu" and ("s", "m0") not in p.w:
            continue
        stack = [(i + 1, 0)]
        seen = {}
        while stack:
            j, d = stack.pop()
            if j >= n or d >= 12:
                continue
            if seen.get(j, 99) <= d:
                continue
            seen[j] = d
            c = ins[j]
            need = required(p, c)
            if need > d:
                errs.append(f"HAZARD need {need} have {d}: [{i}] {p.text}  ->  [{j}] {c.text}")
            if c.kind == "end":
                continue
            if c.kind == "br":
                if c.tgt in labels:
                    stack.append((labels[c.tgt], d + 1))
                if c.op == "s_branch":
                    continue
            stack.append((j + 1, d + c.nop))
    if verbose:
        for e in errs[:40]:
            print(e)
    return errs


def check_waits(trace_lines, verbose=True):
    ins, _ = parse(trace_lines)
    lg, vm = [], []
    errs = []
    for k, c in enumerate(ins):
        touched = set(c.r) | set(c.w)
        for q, nm in ((lg, "lgkm"), (vm, "vm")):
            for d, txt in q:
                if d & touched:
                    errs.append(f"WAIT({nm}) [{k}] {c.text}  touches pending {txt}")
        if c.kind == "wait":
            if c.lg is not None:
                if any(t.startswith("s_") for _, t in lg) and c.lg > 0:
                    errs.append(f"counted lgkmcnt with SMEM outstanding [{k}]")
                while len(lg) > c.lg: lg.pop(0)
            if c.vm is not None:
                while len(vm) > c.vm: vm.pop(0)
        elif c.kind in ("dsr", "dsw", "smem"):
            lg.append((set(c.w), c.text))
        elif c.kind in VMEM_KINDS:
            vm.append((set(c.w), c.text))
    if verbose:
        for e in errs[:40]:
            print(e)
    return errs


class Vm:
    def __init__(self):
        self.q = []

    def issue(self, tag):
        self.q.append(tag)

    def need(self, pred):
        last = -1
        for i, t in enumerate(self.q):
            if pred(t):
                last = i
        n = len(self.q) - 1 - last
        return min(n, 63)


def interleave(mf, slots):
    out = []
    for m, s in zip(mf, slots):
        out.append(m)
        out += s
    return out
```

```python
import sys, math, struct
from asmlib import *

NAME = "gated_mix__sliding_local_dilated__compressed_kv_cla__prompt"
MF = "v_mfma_f32_16x16x32_bf16"
MF16 = "v_mfma_f32_16x16x16_bf16"

WS_KV = 0
WS_Z = 32 << 20
Z_BYTES = 32 * 144 * 4096
WS_WT = 52 << 20
WT_BYTES = 8 * 144 * 4096
HUGE = 0x40000000
NEGBIG = 0xF149F2CA


def fbits(x):
    return struct.unpack("<I", struct.pack("<f", x))[0]


QSCALE = fbits(math.log2(math.e) / math.sqrt(128.0))
ASCALE = fbits(math.log2(math.e) * 0.25)
LOG2E = fbits(math.log2(math.e))

L_W = 0
L_C = 65536
RING = 8
L_AX = 131072
L_WO = 131072 + 18432
L_VOTE = 163840 - 64

sW = 3
SC, SW1, SW2, SW3, SKV, SZ, SX = 4, 8, 12, 16, 20, 24, 28
sH, sP, sT0, sT1 = 32, 33, 34, 35
pX, pWQKV, pWO, pC, pWQ, pWUK, pWUV, pWOB, pGATE, pOUT, pDBG, pWS = 36, 38, 40, 44, 46, 48, 50, 52, 54, 56, 58, 60
sCoff, sCslotW, sCslotR, sW1off, sW2off, sW3off, sW2step, sW3step = 62, 63, 64, 65, 66, 67, 68, 69
sWslot, sM1, sM2, sM3, sCnt, sT2, sT3, sXoff, sKVst = 70, 71, 72, 73, 74, 75, 76, 77, 78
sMask = 64
sRd, sDslot, sDoff, sLoop, sRedo, sZoff = 96, 97, 98, 99, 100, 101
sW4 = 62
sThr = 63


def srd(A, d, ptr, nbytes, add=0):
    if add:
        A(f"s_add_u32 s{d}, s{ptr}, {add}\ns_addc_u32 s{d+1}, s{ptr+1}, 0")
    else:
        A(f"s_mov_b32 s{d}, s{ptr}\ns_mov_b32 s{d+1}, s{ptr+1}")
    A(f"s_mov_b32 s{d+2}, {nbytes}\ns_mov_b32 s{d+3}, 0x20000")


def S4(d):
    return f"s[{d}:{d+3}]"


def place(n, items, start=0, stop=None):
    stop = n if stop is None else stop
    out = [[] for _ in range(n)]
    m = len(items)
    for i, it in enumerate(items):
        g = start + (i * (stop - start)) // m
        out[g] += it if isinstance(it, list) else [it]
    return out


def merge(*ls):
    return [sum((l[g] for l in ls), []) for g in range(len(ls[0]))]


def kv_acc(pair, half):
    if pair < 30:
        return ("v", 16 + 8 * pair + 4 * half)
    return ("a", 240 + 8 * (pair - 30) + 4 * half)


def kv_packed(pair):
    return 136 + 4 * pair if pair < 30 else 128 + 4 * (pair - 30)


def c_dma(half):
    g = []
    for nn in range(4):
        n = 4 * half + nn
        it = []
        if nn == 0:
            it.append(f"s_add_u32 m0, s{sCslotW}, {4096*half}")
        it.append(f"s_add_u32 s{sT2}, s{sCoff}, {n*8192 - nn*1024}")
        it.append(f"buffer_load_dwordx4 v{2 + (n & 1)}, {S4(SC)}, s{sT2} offen offset:{nn*1024} lds")
        g.append(it)
    return g


def c_advance():
    return [f"s_add_u32 s{sCoff}, s{sCoff}, 128",
            f"s_add_u32 s{sCslotW}, s{sCslotW}, 32768",
            f"s_cmp_ge_u32 s{sCslotW}, {L_C + 3*32768}",
            f"s_cselect_b32 s{sT2}, {3*32768}, 0",
            f"s_sub_u32 s{sCslotW}, s{sCslotW}, s{sT2}"]


def w_dma():
    g = []
    g.append([f"s_add_u32 m0, s{sWslot}, s{sM1}",
              f"s_add_u32 s{sT3}, s{sW1off}, {32768-1024}",
              f"buffer_load_dwordx4 v4, {S4(SW1)}, s{sW1off} offen lds"])
    g.append([f"buffer_load_dwordx4 v4, {S4(SW1)}, s{sT3} offen offset:1024 lds",
              f"s_add_u32 s{sW1off}, s{sW1off}, {32*8192}"])
    g.append([f"s_add_u32 m0, s{sWslot}, s{sM2}", "s_nop 0",
              f"buffer_load_dwordx4 v5, {S4(SW2)}, s{sW2off} offen lds",
              f"s_add_u32 s{sW2off}, s{sW2off}, s{sW2step}"])
    g.append([f"s_add_u32 m0, s{sWslot}, s{sM3}",
              f"s_add_u32 s{sWslot}, s{sWslot}, 16384",
              f"buffer_load_dwordx4 v6, {S4(SW3)}, s{sW3off} offen lds",
              f"s_add_u32 s{sW3off}, s{sW3off}, s{sW3step}",
              f"s_and_b32 s{sWslot}, s{sWslot}, 0xffff"])
    return g


def kv_reads(buf, woff):
    b = 64 * buf
    rd = []
    for dt in range(4):
        for j2 in range(2):
            rd.append(f"ds_read_b64_tr_b16 {R('a', b+32+4*dt+2*j2, 2)}, v{9+dt} offset:{woff + j2*1024}")
    rd.append(f"ds_read_b128 {R('a', b)}, v8 offset:0")
    for dt in range(4):
        for j2 in range(2):
            rd.append(f"ds_read_b64_tr_b16 {R('a', b+48+4*dt+2*j2, 2)}, v{9+dt} offset:{woff + 8192 + j2*1024}")
    for kt in range(1, 8):
        rd.append(f"ds_read_b128 {R('a', b+4*kt)}, v8 offset:{kt*2048}")
    return rd


def kv_mfmas(buf):
    b = 64 * buf
    mf = []
    for kt in range(8):
        c = R('a', b + 4 * kt)
        for dt in range(4):
            f, r = kv_acc(kt * 2 + (dt >> 1), dt & 1)
            mf.append(f"{MF} {R(f, r)}, {R('a', b+32+4*dt)}, {c}, {R(f, r)}")
        for dt in range(4):
            f, r = kv_acc(16 + (kt >> 1) * 4 + dt, kt & 1)
            mf.append(f"{MF} {R(f, r)}, {c}, {R('a', b+48+4*dt)}, {R(f, r)}")
    return mf


def setup_A(A):
    A("s_cmp_ge_u32 s2, 256\ns_cbranch_scc1 L_A_end")
    A(f"s_load_dwordx16 s[36:51], s[0:1], 0\ns_load_dwordx8 s[52:59], s[0:1], 64\ns_load_dwordx2 s[60:61], s[0:1], 96")
    A(f"v_lshrrev_b32 v13, 6, v0\nv_and_b32 v0, 63, v0\nv_readfirstlane_b32 s{sW}, v13")
    A(f"s_and_b32 s{sH}, s2, 7\ns_lshl_b32 s{sH}, s{sH}, 2\ns_lshr_b32 s{sT0}, s2, 6\ns_add_u32 s{sH}, s{sH}, s{sT0}")
    A(f"s_lshr_b32 s{sP}, s2, 3\ns_and_b32 s{sP}, s{sP}, 7")
    A("v_lshlrev_b32 v1, 4, v0")
    A("v_lshrrev_b32 v13, 4, v0\nv_and_b32 v14, 7, v0\nv_xor_b32 v14, v14, v13\nv_lshlrev_b32 v14, 4, v14")
    A("v_lshrrev_b32 v15, 3, v0\nv_lshl_add_u32 v2, v15, 10, v14\nv_xor_b32 v3, 64, v2")
    A(f"s_and_b32 s{sT0}, s{sW}, 1\ns_lshl_b32 s{sT1}, s{sT0}, 2")
    A(f"v_or_b32 v14, s{sT1}, v13\nv_bfe_u32 v15, v0, 1, 3\nv_xor_b32 v14, v14, v15\nv_lshlrev_b32 v14, 5, v14")
    A("v_lshl_add_u32 v14, v13, 13, v14\nv_and_b32 v15, 1, v0\nv_lshl_add_u32 v4, v15, 4, v14")
    A("v_mov_b32 v5, v4\nv_mov_b32 v6, v4")
    A("s_waitcnt lgkmcnt(0)")
    srd(A, SC, pC, 2048 * 1024)
    srd(A, SW1, pWUK, 512 * 8192)
    srd(A, SW2, pWUV, 512 * 8192)
    srd(A, SW3, pWUV, 512 * 8192)
    A(f"s_lshl_b32 s{sCoff}, s{sP}, 2\ns_add_u32 s{sCoff}, s{sCoff}, s{sW}\ns_lshl_b32 s{sCoff}, s{sCoff}, 16")
    A(f"s_lshl_b32 s{sCslotW}, s{sW}, 13\ns_add_u32 s{sCslotW}, s{sCslotW}, {L_C}")
    A(f"s_lshl_b32 s{sW1off}, s{sW}, 16\ns_lshl_b32 s{sT1}, s{sH}, 8\ns_add_u32 s{sW1off}, s{sW1off}, s{sT1}")
    A(f"s_mov_b32 s{sW2off}, s{sW1off}\ns_add_u32 s{sW3off}, s{sW1off}, 32768")
    A(f"s_mov_b32 s{sW2step}, {32*8192}\ns_mov_b32 s{sW3step}, {32*8192}")
    A(f"s_mov_b32 s{sWslot}, 0\ns_lshl_b32 s{sM1}, s{sW}, 11\ns_add_u32 s{sM2}, s{sM1}, 8192\ns_add_u32 s{sM3}, s{sM1}, 9216")


def phase_kv(A):
    A(sum(c_dma(0), []))
    A(sum(w_dma(), [])); A(sum(c_dma(1), [])); A(c_advance())
    A(sum(w_dma(), [])); A(sum(c_dma(0), []))
    A(sum(w_dma(), [])); A(sum(c_dma(1), [])); A(c_advance())
    A(sum(w_dma(), [])); A(sum(c_dma(0), []))
    A(f"s_and_b32 s{sT0}, s{sW}, 1\ns_lshl_b32 s{sT0}, s{sT0}, 14")
    A("v_and_b32 v14, 15, v0\nv_lshrrev_b32 v15, 1, v14\nv_xor_b32 v15, v15, v13\nv_lshlrev_b32 v15, 4, v15")
    A(f"v_lshl_add_u32 v7, v14, 7, v15\nv_add_u32 v7, s{sT0}, v7")
    A("v_lshrrev_b32 v14, 2, v14\nv_lshl_add_u32 v15, v13, 3, v14\nv_lshlrev_b32 v15, 8, v15")
    A("v_and_b32 v9, 1, v13\nv_lshl_add_u32 v14, v9, 2, v14\nv_lshl_add_u32 v15, v14, 5, v15")
    A("v_and_b32 v14, 3, v0\nv_lshl_add_u32 v15, v14, 3, v15")
    A(f"s_lshr_b32 s{sT0}, s{sW}, 1\ns_lshl_b32 s{sT0}, s{sT0}, 7")
    A(f"v_xor_b32 v9, s{sT0}, v15\nv_xor_b32 v10, 32, v9\nv_xor_b32 v11, 64, v9\nv_xor_b32 v12, 0x60, v9")
    A(f"s_lshl_b32 s{sT0}, s{sH}, 20\ns_add_u32 s{SKV}, s{pWS}, s{sT0}\ns_addc_u32 s{SKV+1}, s{pWS+1}, 0")
    A(f"s_mov_b32 s{SKV+2}, 0x100000\ns_mov_b32 s{SKV+3}, 0x20000")
    srd(A, SZ, pWS, Z_BYTES, WS_Z)
    A(f"s_lshl_b32 s{sT0}, s{sP}, 1\ns_sub_u32 s{sT1}, 30, s{sT0}\ns_cmp_ge_u32 s{sW}, 2\ns_cselect_b32 s{sXoff}, s{sT1}, s{sT0}")
    A(f"s_and_b32 s{sT0}, s{sW}, 1\ns_add_u32 s{sXoff}, s{sXoff}, s{sT0}\ns_lshl_b32 s{sXoff}, s{sXoff}, 16")
    A(f"s_lshl_b32 s{sKVst}, s{sP}, 1\ns_add_u32 s{sKVst}, s{sKVst}, s{sT0}\ns_lshl_b32 s{sKVst}, s{sKVst}, 16")
    for i in range(16, 256):
        A(f"v_mov_b32 v{i}, 0")
    for i in range(240, 256):
        A(f"v_accvgpr_write_b32 a{i}, 0")
    A(f"s_mov_b32 s{sCslotR}, {L_C}\nv_add_u32 v8, s{sCslotR}, v7\ns_mov_b32 s{sCnt}, 0")
    A("s_waitcnt vmcnt(24)\ns_barrier")
    A(kv_reads(0, 0))
    A("L_kv_loop:")
    A("s_waitcnt vmcnt(16) lgkmcnt(0)\ns_barrier")
    rd = place(64, [["v_xor_b32 v8, 64, v8"]] + kv_reads(1, 16384), 0, 50)
    sw = [f"s_cmp_eq_u32 s{sCnt}, 5",
          f"s_cselect_b32 s{SC}, s{pX}, s{SC}", f"s_cselect_b32 s{SC+1}, s{pX+1}, s{SC+1}",
          f"s_cselect_b32 s{sCoff}, s{sXoff}, s{sCoff}"]
    dm = place(64, w_dma() + c_dma(1) + [c_advance(), sw], 1, 61)
    A(interleave(kv_mfmas(0), merge(dm, rd)))
    A("s_waitcnt vmcnt(16) lgkmcnt(0)\ns_barrier")
    adv = [f"s_add_u32 s{sCslotR}, s{sCslotR}, 32768", f"s_cmp_ge_u32 s{sCslotR}, {L_C+3*32768}",
           f"s_cselect_b32 s{sCslotR}, {L_C}, s{sCslotR}", f"v_add_u32 v8, s{sCslotR}, v7",
           "v_xor_b32 v9, 0x8000, v9"]
    rd = place(64, [adv, ["v_xor_b32 v10, 0x8000, v10", "v_xor_b32 v11, 0x8000, v11"], ["v_xor_b32 v12, 0x8000, v12"]] + kv_reads(0, 0), 0, 54)
    dm = place(64, w_dma() + c_dma(0), 3, 59)
    A(interleave(kv_mfmas(1), merge(dm, rd)))
    A(f"s_cmp_lg_u32 s{sCnt}, 5\ns_cbranch_scc1 L_kv_nosw")
    srd(A, SW1, pWQ, 512 * 8192)
    srd(A, SW2, pWQKV, 512 * 3072)
    srd(A, SW3, pX, 2048 * 1024)
    A(f"s_lshl_b32 s{sW1off}, s{sW}, 16\ns_lshl_b32 s{sT1}, s{sH}, 8\ns_add_u32 s{sW1off}, s{sW1off}, s{sT1}")
    A(f"s_lshl_b32 s{sT0}, s{sW}, 10\ns_add_u32 s{sM2}, s{sT0}, 8192\ns_add_u32 s{sM3}, s{sT0}, 12288")
    A(f"s_lshl_b32 s{sT1}, s{sH}, 5\ns_add_u32 s{sW2off}, s{sT0}, s{sT1}")
    A(f"s_cmp_eq_u32 s{sW}, 3\ns_cselect_b32 s{sW2off}, {HUGE}, s{sW2off}\ns_mov_b32 s{sW2step}, {32*3072}")
    A(f"s_sub_u32 s{sT0}, 15, s{sP}\ns_cmp_eq_u32 s{sW}, 0\ns_cselect_b32 s{sT0}, s{sP}, s{sT0}")
    A(f"s_lshl_b32 s{sW3off}, s{sT0}, 17\ns_sub_u32 s{sW3off}, s{sW3off}, 16384")
    A(f"s_cmp_eq_u32 s{sT0}, 0\ns_cselect_b32 s{sW3off}, {HUGE}, s{sW3off}")
    A(f"s_cmp_ge_u32 s{sW}, 2\ns_cselect_b32 s{sW3off}, {HUGE}, s{sW3off}\ns_mov_b32 s{sW3step}, 64")
    A("v_bfe_u32 v5, v0, 3, 2\nv_lshlrev_b32 v5, 3, v5\nv_lshrrev_b32 v6, 5, v0\nv_lshl_add_u32 v5, v6, 2, v5")
    A("v_bfe_u32 v6, v0, 1, 2\nv_add_u32 v5, v5, v6\nv_mul_u32_u24 v5, 0xc00, v5\nv_and_b32 v6, 1, v0\nv_lshl_add_u32 v5, v6, 4, v5")
    A("v_and_b32 v6, 15, v0\nv_lshlrev_b32 v6, 10, v6\nv_lshl_add_u32 v6, v13, 4, v6")
    A("L_kv_nosw:")
    A(f"s_add_u32 s{sCnt}, s{sCnt}, 1\ns_cmp_lt_u32 s{sCnt}, 8\ns_cbranch_scc1 L_kv_loop")


def kv_convert(A):
    A(f"s_mov_b32 s{sT0}, {QSCALE:#x}")
    for j in range(29, -1, -1):
        b = 16 + 8 * j
        d = kv_packed(j)
        if j < 16:
            for k in range(8):
                A(f"v_mul_f32 v{b+k}, s{sT0}, v{b+k}")
        for k in range(3, -1, -1):
            A(f"v_cvt_pk_bf16_f32 v{d+k}, v{b+2*k}, v{b+2*k+1}")
    for k in range(16):
        A(f"v_accvgpr_read_b32 v{16+k}, a{240+k}")
    for k in range(8):
        A(f"v_cvt_pk_bf16_f32 v{128+k}, v{16+2*k}, v{16+2*k+1}")


def kv_store(pair):
    if pair < 16:
        kt, dd = pair >> 1, pair & 1
        off = (kt >> 1) * 16384 + (kt & 1) * 4096
        return [f"s_add_u32 s{sT0}, s79, {off}",
                f"buffer_store_dwordx4 {R('v', kv_packed(pair))}, v1, {S4(SKV)}, s{sT0} offen offset:{dd*1024} sc1"]
    sp, dt = (pair - 16) >> 2, (pair - 16) & 3
    return [f"s_add_u32 s{sT0}, s80, {sp*16384}",
            f"buffer_store_dwordx4 {R('v', kv_packed(pair))}, v1, {S4(SKV)}, s{sT0} offen offset:{dt*1024} sc1"]


def q_reads(t):
    b = 64 * (t & 1)
    ws = (t & 3) * 16384
    rd = []
    for qg in range(4):
        rd.append(f"ds_read_b128 {R('a', b+4*qg)}, v8 offset:{qg*8192}")
    for dt in range(8):
        for j2 in range(2):
            rd.append(f"ds_read_b64_tr_b16 {R('a', b+20+4*dt+2*j2, 2)}, v{72+dt} offset:{ws + j2*1024}")
    for m in range(3):
        for j2 in range(2):
            rd.append(f"ds_read_b64_tr_b16 {R('a', b+52+4*m+2*j2, 2)}, v9 offset:{ws + 8192 + m*1024 + j2*512}")
    rd.append(f"ds_read_b128 {R('a', b+16)}, v10 offset:{ws + 12288}")
    return rd


def q_xaddr(t):
    slot = (8 + t // 2) % 3
    if t & 1:
        return "v_xor_b32 v8, 64, v8"
    return f"v_add_u32 v8, {L_C + slot*32768}, v7"


def q_mfmas(t):
    b = 64 * (t & 1)
    mf = []
    def cin(r, f):
        return "0" if t == 0 else R(f, r)
    for dt in range(8):
        for qg in range(4):
            r = 128 + 32 * qg + 4 * dt
            mf.append(f"{MF} {R('a', r)}, {R('a', b+20+4*dt)}, {R('a', b+4*qg)}, {cin(r, 'a')}")
    for m in range(3):
        wf = R('a', b + 52 + 4 * m)
        lst = [(16 + 12 * qg + 4 * m, R('a', b + 4 * qg)) for qg in range(4)]
        if m >= 1:
            lst.append((64 + 4 * (m - 1), R('a', b + 16)))
        for r, xf in lst:
            if m < 2:
                mf.append(f"{MF} {R('v', r)}, {wf}, {xf}, {cin(r, 'v')}")
            else:
                mf.append(f"{MF} {R('v', r)}, {xf}, {wf}, {cin(r, 'v')}")
    return mf


STORES_PER_STEP = 3


def phase_q(A, vm):
    A(f"s_and_b32 s{sT0}, s{sW}, 1\ns_lshl_b32 s{sT0}, s{sT0}, 14\ns_lshl_b32 s{sT1}, s{sW}, 11\ns_sub_u32 s{sT0}, s{sT1}, s{sT0}")
    A(f"v_add_u32 v7, s{sT0}, v7")
    A("v_lshlrev_b32 v9, 3, v0")
    A(f"s_and_b32 s{sT0}, s{sW}, 1\ns_lshl_b32 s{sT0}, s{sT0}, 10\nv_add_u32 v10, s{sT0}, v1")
    A(f"s_lshr_b32 s{sT0}, s{sW}, 1\ns_lshl_b32 s{sT1}, s{sT0}, 11\ns_add_u32 s79, s{sKVst}, s{sT1}")
    A(f"s_lshl_b32 s{sT1}, s{sT0}, 12\ns_add_u32 s80, s{sKVst}, s{sT1}\ns_add_u32 s80, s80, 8192")
    A("s_waitcnt lgkmcnt(0)\ns_nop 7")
    kv_convert(A)
    for dt in range(8):
        A(f"v_xor_b32 v{72+dt}, {32*dt}, v15")
    A(q_xaddr(0))
    A(q_reads(0))
    nst = 0
    zeroed = 0
    signaled = False
    for t in range(16):
        T = 16 + t
        allst = nst >= 32
        if signaled:
            A("s_waitcnt lgkmcnt(0)\ns_barrier")
        else:
            if allst and t >= 13:
                n = 0
            else:
                n = vm.need(lambda g: g[0] != "st" and g[1] <= T - 3)
            A(f"s_waitcnt vmcnt({n}) lgkmcnt(0)\ns_barrier")
        pre = []
        if allst and not signaled and t >= 13:
            signaled = True
            A(f"s_cmp_lg_u32 s{sW}, 0\ns_cbranch_scc1 L_nosig")
            A(f"s_lshl_b32 s{sT0}, s{sH}, 2\nv_mov_b32 v11, s{sT0}\nv_mov_b32 v12, 1\ns_mov_b64 exec, 1")
            A(f"global_atomic_add v11, v12, s[{pDBG}:{pDBG+1}] sc1\ns_mov_b64 exec, -1")
            A("L_nosig:")
        mf = q_mfmas(t)
        n = len(mf)
        rd = place(n, [[q_xaddr(t + 1)]] + q_reads(t + 1), 0, 36) if t < 15 else [[] for _ in range(n)]
        items = []
        if t + 4 < 16:
            items += [("w", x) for x in w_dma()]
        if T <= 26:
            items += [("c", x) for x in c_dma(1 if T % 2 == 0 else 0)]
            if T % 2 == 0:
                items.append(("s", c_advance()))
        its = []
        k = 0
        sts = []
        while k < STORES_PER_STEP and nst < 32:
            sts.append(("st", kv_store(nst))); nst += 1; k += 1
        allit = []
        while items or sts:
            if items: allit.append(items.pop(0))
            if items: allit.append(items.pop(0))
            if items: allit.append(items.pop(0))
            if sts: allit.append(sts.pop(0))
        for kind, x in allit:
            if kind != "s":
                vm.issue((kind, T))
        dm = place(n, [x for _, x in allit], 1, n - 2) if allit else [[] for _ in range(n)]
        done = nst - k
        zl = []
        while zeroed < done and len(zl) < 16:
            d = kv_packed(zeroed)
            zl += [f"v_mov_b32 v{d+i}, 0" for i in range(4)]
            zeroed += 1
        zz = place(n, zl, 30, n) if zl else [[] for _ in range(n)]
        if t == 15:
            A(kv_sync_and_first_dma(vm))
        A(interleave(mf, merge(dm, rd, zz)))
    assert signaled and zeroed == 32, (signaled, zeroed)


def kv_rec_dma():
    g = []
    g.append([f"s_add_u32 m0, s{sDslot}, s{sW4}", f"s_add_u32 s{sDslot}, s{sDslot}, 16384",
              f"buffer_load_dwordx4 v1, {S4(SKV)}, s{sDoff} offen lds"])
    g.append([f"s_and_b32 s{sDslot}, s{sDslot}, {RING*16384-1:#x}",
              f"buffer_load_dwordx4 v1, {S4(SKV)}, s{sDoff} offen offset:1024 lds"])
    g.append([f"buffer_load_dwordx4 v1, {S4(SKV)}, s{sDoff} offen offset:2048 lds"])
    g.append([f"buffer_load_dwordx4 v1, {S4(SKV)}, s{sDoff} offen offset:3072 lds",
              f"s_add_u32 s{sDoff}, s{sDoff}, 16384"])
    return g


def ring_restart():
    L = [f"s_mov_b32 s{sDslot}, {(RING-1)*16384}", f"s_mov_b32 s{sDoff}, s{sW4}"]
    for r in range(RING - 2):
        L += sum(kv_rec_dma(), [])
    return L


def kv_sync_and_first_dma(vm):
    L = []
    L.append(f"s_lshl_b32 s{sT0}, s{sH}, 2")
    L.append(f"v_mov_b32 v11, s{sT0}")
    L.append(f"s_mov_b32 s{sT1}, 0")
    L.append("L_poll:")
    L.append(f"global_load_dword v12, v11, s[{pDBG}:{pDBG+1}] sc1")
    L.append(f"s_add_u32 s{sT1}, s{sT1}, 1")
    L.append(f"s_cmp_ge_u32 s{sT1}, 0x40000")
    L.append("s_cbranch_scc1 L_poll_done")
    L.append("s_waitcnt vmcnt(0)")
    L.append(f"v_readfirstlane_b32 s{sT0}, v12")
    L.append(f"s_cmp_lt_u32 s{sT0}, 8")
    L.append("s_cbranch_scc1 L_poll")
    L.append("L_poll_done:")
    L.append("buffer_inv sc1")
    L.append(f"s_lshl_b32 s{sW4}, s{sW}, 12")
    L.append(f"s_lshl_b32 s{sT0}, s{sP}, 16")
    L.append(f"s_sub_u32 s{SKV+2}, 0x100000, s{sT0}")
    L += ring_restart()
    return L


def xlane(op, x, t):
    return [[f"v_mov_b32 v{t}, v{x}"], [f"v_permlane32_swap_b32 v{x}, v{t}"], [f"{op} v{x}, v{x}, v{t}"],
            [f"v_mov_b32 v{t}, v{x}"], [f"v_permlane16_swap_b32 v{x}, v{t}"], [f"{op} v{x}, v{x}, v{t}"]]


def staged(A, per_q):
    for st in range(len(per_q[0])):
        for q in range(len(per_q)):
            A(per_q[q][st])


def phase_abranch(A):
    A("s_nop 7")
    A(f"s_mov_b32 s{sT0}, {ASCALE:#x}")
    for qg in range(4):
        B = 16 + 12 * qg
        A(f"v_cvt_pk_bf16_f32 v{B+4}, v{B+4}, v{B+5}\nv_cvt_pk_bf16_f32 v{B+5}, v{B+6}, v{B+7}")
        A(f"v_cvt_pk_bf16_f32 v{B+6}, v{B+8}, v{B+9}\nv_cvt_pk_bf16_f32 v{B+7}, v{B+10}, v{B+11}")
    A("v_cvt_pk_bf16_f32 v64, v64, v65\nv_cvt_pk_bf16_f32 v65, v66, v67\nv_cvt_pk_bf16_f32 v66, v68, v69\nv_cvt_pk_bf16_f32 v67, v70, v71")
    A(f"s_lshl_b32 s{sT1}, s{sW}, 10\ns_add_u32 s{sT1}, s{sT1}, {L_AX}\nv_add_u32 v11, s{sT1}, v1")
    A(f"s_and_b32 s{sT1}, s{sW}, 1\ns_mul_i32 s{sT1}, s{sT1}, 9216\ns_add_u32 s{sT1}, s{sT1}, {L_AX}\nv_add_u32 v12, s{sT1}, v1")
    pos = [1, 5, 10, 14]
    for qg in range(4):
        A(f"ds_write_b128 v11, {R('v', 16+12*qg+4)} offset:{pos[qg]*1024}")
    A("ds_write_b128 v12, v[64:67]")
    for qg in range(4):
        B = 16 + 12 * qg
        for k in range(4):
            A(f"v_mul_f32 v{B+k}, s{sT0}, v{B+k}")
    for qg in range(4):
        B = 16 + 12 * qg
        A(f"v_cvt_pk_bf16_f32 v{B}, v{B}, v{B+1}\nv_cvt_pk_bf16_f32 v{B+1}, v{B+2}, v{B+3}")
    A("v_and_b32 v14, 15, v0\nv_lshlrev_b32 v15, 2, v13\nv_sub_u32 v14, v14, v15")
    A(f"v_mov_b32 v15, {NEGBIG:#x}")
    for r in range(4):
        for base, add in ((72, 0), (76, 16)):
            A(f"v_add_u32 v2, {add - r}, v14\nv_and_b32 v2, 0xfffffff1, v2\nv_cmp_eq_u32 vcc, 0, v2\ns_nop 1\nv_cndmask_b32 v{base+r}, v15, 0, vcc".replace(f"v_cndmask_b32 v{base+r}, v15, 0, vcc", f"v_cndmask_b32_e64 v{base+r}, v15, 0, vcc"))
    A(f"s_or_b32 s{sT1}, s{sP}, s{sW}\ns_cmp_eq_u32 s{sT1}, 0\ns_cselect_b64 vcc, -1, 0")
    for r in range(4):
        A(f"v_cndmask_b32 v{68+r}, v{76+r}, v15, vcc")
    A("s_waitcnt lgkmcnt(0)\ns_barrier")
    for qg in range(4):
        B = 16 + 12 * qg
        A(f"ds_read_b64 {R('v', B+2, 2)}, v11 offset:{(pos[qg]-1)*1024}")
        A(f"ds_read_b64 {R('v', B+8, 2)}, v11 offset:{(pos[qg]-1)*1024+8}")
    for qg in range(4):
        B = 16 + 12 * qg
        A(f"v_mov_b32 v{B+10}, v{B+6}\nv_mov_b32 v{B+11}, v{B+7}")
    for qg in range(4):
        B = 16 + 12 * qg
        A(f"{MF16} {R('v', 84+8*qg)}, {R('v', B+4, 2)}, {R('v', B, 2)}, v[72:75]")
    A("s_waitcnt lgkmcnt(0)")
    for qg in range(4):
        B = 16 + 12 * qg
        A(f"{MF16} {R('v', 80+8*qg)}, {R('v', B+2, 2)}, {R('v', B, 2)}, {'v[68:71]' if qg == 0 else 'v[76:79]'}")
    A("s_nop 4")
    per = []
    for qg in range(4):
        S = 80 + 8 * qg; m = 112 + 4 * qg; t = m + 1; B = 16 + 12 * qg
        st = [[f"v_max3_f32 v{m}, v{S+4}, v{S+5}, v{S+6}"], [f"v_max3_f32 v{m}, v{m}, v{S+7}, v{S}"],
              [f"v_max3_f32 v{m}, v{m}, v{S+1}, v{S+2}"], [f"v_max_f32 v{m}, v{m}, v{S+3}"]]
        st += xlane("v_max_f32", m, t)
        st += [[f"v_sub_f32 v{S+k}, v{S+k}, v{m}" for k in range(8)]]
        st += [[f"v_exp_f32 v{S+k}, v{S+k}" for k in range(8)]]
        st += [[f"v_add_f32 v{m}, v{S}, v{S+1}", f"v_add_f32 v{t}, v{S+2}, v{S+3}", f"v_add_f32 v{m+2}, v{S+4}, v{S+5}", f"v_add_f32 v{m+3}, v{S+6}, v{S+7}",
                f"v_add_f32 v{m}, v{m}, v{t}", f"v_add_f32 v{m+2}, v{m+2}, v{m+3}", f"v_add_f32 v{m}, v{m}, v{m+2}"]]
        st += [[f"v_cvt_pk_bf16_f32 v{S+k}, v{S+2*k}, v{S+2*k+1}" for k in range(4)]]
        st += [[f"{MF} {R('v', B)}, {R('v', B+8)}, {R('v', S)}, 0"]]
        st += xlane("v_add_f32", m, t)
        st += [[f"v_rcp_f32 v{m}, v{m}"]]
        st += [[f"v_mul_f32 v{B+k}, v{B+k}, v{m}" for k in range(4)]]
        st += [[f"v_cvt_pk_bf16_f32 v{B}, v{B}, v{B+1}", f"v_cvt_pk_bf16_f32 v{B+1}, v{B+2}, v{B+3}"]]
        per.append(st)
    staged(A, per)
    A(f"s_lshr_b32 s{sT0}, s{sH}, 1\ns_add_u32 s{sT0}, s{sT0}, 128\ns_lshl_b32 s{sT0}, s{sT0}, 12")
    A(f"s_and_b32 s{sT1}, s{sH}, 1\ns_lshl_b32 s{sT1}, s{sT1}, 3\ns_add_u32 s{sT0}, s{sT0}, s{sT1}")
    A(f"s_lshl_b32 s{sT1}, s{sW}, 10\ns_add_u32 s{sT0}, s{sT0}, s{sT1}")
    A(f"s_lshl_b32 s{sZoff}, s{sH}, 14\ns_add_u32 s{sZoff}, s{sZoff}, s{sT1}")
    for qg in range(4):
        A(tile_off(qg, sT1, sT0))
        A(f"buffer_store_dwordx2 {R('v', 16+12*qg, 2)}, v1, {S4(SZ)}, s{sT1} offen")


def tile_off(qg, d, base):
    TS = 144 * 4096
    if qg < 2:
        return [f"s_mul_i32 s{d}, s{sP}, {2*TS}", f"s_add_u32 s{d}, s{d}, s{base}"] + ([f"s_add_u32 s{d}, s{d}, {TS}"] if qg else [])
    return [f"s_mul_i32 s{d}, s{sP}, {2*TS}", f"s_sub_u32 s{d}, s{base}, s{d}", f"s_add_u32 s{d}, s{d}, {(28+qg)*TS}"]


def q_convert(A):
    A("s_nop 1")
    for qg in range(4):
        for k in range(32):
            A(f"v_accvgpr_read_b32 v{24+k}, a{128+32*qg+k}")
        for k in range(16):
            A(f"v_cvt_pk_bf16_f32 v{64+16*qg+k}, v{24+2*k}, v{24+2*k+1}")


def wo_relayout_issue(A):
    pass


def wo_relayout(A):
    srd(A, SX, pWOB, 4096 * 1024)
    A("v_lshrrev_b32 v2, 3, v0\nv_and_b32 v3, 7, v0\nv_lshlrev_b32 v3, 4, v3\nv_lshl_add_u32 v2, v2, 10, v3")
    A(f"s_lshl_b32 s{sT0}, s{sH}, 2\ns_add_u32 s{sT0}, s{sT0}, s{sW}\ns_lshl_b32 s{sT0}, s{sT0}, 15\ns_lshl_b32 s{sT1}, s{sP}, 7\ns_add_u32 s{sT0}, s{sT0}, s{sT1}")
    A(f"s_lshl_b32 s{sLoop}, s{sW}, 13\ns_add_u32 s{sLoop}, s{sLoop}, {L_AX}\ns_mov_b32 m0, s{sLoop}\ns_nop 0")
    for n in range(4):
        A(f"buffer_load_dwordx4 v2, {S4(SX)}, s{sT0} offen offset:{n*1024} lds\ns_add_u32 s{sT0}, s{sT0}, {8192-1024}")
    srd(A, SX, pWO, 512 * 1024)
    A(f"s_lshl_b32 s{sT0}, s{sH}, 15\ns_add_u32 s{sT0}, s{sT0}, s{sT1}")
    A(f"s_and_b32 s{sT1}, s{sH}, 3\ns_cmp_lg_u32 s{sT1}, s{sW}\ns_cselect_b32 s{sT0}, {HUGE}, s{sT0}")
    A(f"s_add_u32 m0, s{sLoop}, 4096")
    A("s_nop 0")
    for n in range(4):
        A(f"buffer_load_dwordx4 v2, {S4(SX)}, s{sT0} offen offset:{n*1024} lds\ns_add_u32 s{sT0}, s{sT0}, {8192-1024}")


def wo_relayout_finish(A, tmpf, tmp):
    A("v_bfe_u32 v2, v0, 2, 4\nv_lshlrev_b32 v2, 7, v2\nv_and_b32 v3, 3, v0\nv_lshl_add_u32 v2, v3, 4, v2")
    A(f"s_lshl_b32 s{sT0}, s{sW}, 13\ns_add_u32 s{sT0}, s{sT0}, {L_AX}\nv_add_u32 v2, s{sT0}, v2")
    for un in range(2):
        for ct in range(4):
            for j2 in range(2):
                A(f"ds_read_b64_tr_b16 {R(tmpf, tmp+16*un+4*ct+2*j2, 2)}, v2 offset:{un*4096 + j2*2048 + (ct>>1)*64 + (ct&1)*8}")
    srd(A, SX, pWS, WT_BYTES, WS_WT)
    A(f"s_mul_i32 s{sT0}, s{sP}, 144\ns_lshl_b32 s{sT1}, s{sH}, 2\ns_add_u32 s{sT1}, s{sT1}, s{sW}\ns_add_u32 s{sT1}, s{sT1}, s{sT0}\ns_lshl_b32 s{sT1}, s{sT1}, 12")
    A(f"s_add_u32 s{sT0}, s{sT0}, s{sH}\ns_add_u32 s{sT0}, s{sT0}, 128\ns_lshl_b32 s{sT0}, s{sT0}, 12")
    A(f"s_and_b32 s{sLoop}, s{sH}, 3\ns_cmp_lg_u32 s{sLoop}, s{sW}\ns_cselect_b32 s{sT0}, {HUGE}, s{sT0}")
    A(f"s_cmp_ge_u32 s{sH}, 16\ns_cselect_b32 s{sT0}, {HUGE}, s{sT0}")
    A("s_waitcnt lgkmcnt(0)")
    for ct in range(4):
        A(f"buffer_store_dwordx4 {R(tmpf, tmp+4*ct)}, v1, {S4(SX)}, s{sT1} offen offset:{ct*1024}")
    for ct in range(4):
        A(f"buffer_store_dwordx4 {R(tmpf, tmp+16+4*ct)}, v1, {S4(SX)}, s{sT0} offen offset:{ct*1024}")


vS, vP, vNM, vL, vQ, vO, vCM = 16, 32, 40, 56, 64, 128, 8
aK, aV = 0, 64


def qk_mf(qg, par, sb, masked):
    out = []
    for b in range(2):
        for d in range(4):
            s = R('v', vS + 8 * sb + 4 * b)
            c = s if d else (R('v', vCM + 4 * b) if masked else R('v', vNM + 4 * qg))
            out.append(f"{MF} {s}, {R('a', aK+32*par+16*b+4*d)}, {R('v', vQ+16*qg+4*d)}, {c}")
    return out


def pv_mf(qg, par, pb):
    return [f"{MF} {R('v', vO+32*qg+4*dg)}, {R('a', aV+32*par+4*dg)}, {R('v', vP+4*pb)}, {R('v', vO+32*qg+4*dg)}" for dg in range(8)]


def softmax_items(qg, sb):
    S = vS + 8 * sb; P = vP + 4 * sb; l = vL + 2 * qg
    E = lambda i: (8, f"v_exp_f32 v{S+i}, v{S+i}")
    AD = lambda i: (4, f"v_add_f32 v{l+(i&1)}, v{l+(i&1)}, v{S+i}")
    CV = lambda i: (4, f"v_cvt_pk_bf16_f32 v{P+i}, v{S+2*i}, v{S+2*i+1}")
    return [E(0), E(1), E(2), AD(0), AD(1), E(3), CV(0), AD(2), E(4), AD(3), CV(1), E(5), E(6), AD(4), AD(5), E(7), CV(2), AD(6), AD(7), CV(3)]


def cmask_items(qg, sig):
    return [f"v_cndmask_b32_e64 v{vCM+4*b+r}, v7, v{vNM+4*qg}, s[{sMask+2*(8*sig+4*b+r)}:{sMask+2*(8*sig+4*b+r)+1}]" for b in range(2) for r in range(4)]


def rec_reads(par, off):
    k = [f"ds_read_b128 {R('a', aK+32*par+4*j)}, v2 offset:{off + j*1024}" for j in range(8)]
    v = [f"ds_read_b128 {R('a', aV+32*par+4*j)}, v2 offset:{off + 8192 + j*1024}" for j in range(8)]
    return k, v


def pack_slot(mf, sm, extra, salu_tail=None):
    n = len(mf)
    gaps = []
    cur = []; cost = 0
    for c, t in sm:
        cur.append(t); cost += c
        if cost >= 8:
            gaps.append(cur); cur = []; cost = 0
    if cur:
        gaps.append(cur)
    extra = list(extra)
    free = n - len(gaps)
    npairs = min(max(free, 0), (len(extra) + 1) // 2)
    res = []
    ne = len(extra)
    rest = ne - min(ne, 2 * npairs)
    total = max(n, len(gaps) + npairs)
    pairpos = set()
    if npairs:
        for i in range(npairs):
            pairpos.add((i * (total - 2)) // npairs + 1 if npairs < total - 1 else i)
    ridepos = []
    nonpair = [g for g in range(total) if g not in pairpos]
    if rest:
        lim = max(rest, len(nonpair) - 3)
        ridepos = [nonpair[(i * lim) // rest] if (i * lim) // rest < len(nonpair) else nonpair[-1] for i in range(rest)]
    gi = 0
    for g in range(total):
        cur = []
        if g in pairpos:
            for _ in range(2):
                if extra: cur += extra.pop(0)
        else:
            for _ in range(ridepos.count(g)):
                if extra: cur += extra.pop(0)
            if gi < len(gaps):
                cur += gaps[gi]; gi += 1
        res.append(cur)
    assert not extra and gi == len(gaps)
    while len(res) > n:
        last = res.pop()
        res[-1] += last
    if salu_tail:
        res[-2] = salu_tail + res[-2]
    return interleave(mf, res)


def insert_lgkm(lines, entry):
    out = []
    q = [(set(entry), -100)] if entry else []
    nm = 0
    for ln in lines:
        c = Ins(ln)
        touched = set(c.r) | set(c.w)
        hit = -1
        for i, (d, _) in enumerate(q):
            if d & touched:
                hit = i
        if hit >= 0:
            while hit + 1 < len(q) and q[hit + 1][1] <= nm - 7:
                hit += 1
            n = min(len(q) - 1 - hit, 15)
            w = f"s_waitcnt lgkmcnt({n})"
            k = len(out)
            while k > 0 and Ins(out[k-1]).kind in ("valu", "trans"):
                k -= 1
            out.insert(k, w)
            q = q[len(q) - n:] if n else []
        if c.kind == "wait" and c.lg is not None:
            q = q[len(q) - c.lg:] if c.lg else []
        if c.kind in ("dsr", "dsw"):
            q.append((set(c.w), nm))
        if c.kind == "mfma":
            nm += 1
        out.append(ln)
    return out


VMN = (RING - 5) * 4


def att_block(order, masked, next_masked_first=False, vmn=None, loop_tail=None):
    n = len(order)
    L = [f"s_waitcnt vmcnt({VMN if vmn is None else vmn})", "s_barrier"]
    body = []
    units = [(s, q) for s in range(2) for q in order]
    for u, (s, q) in enumerate(units):
        j = u % n
        sb = u & 1
        if u + 1 < len(units):
            s2, q2 = units[u + 1]; m2 = (q2 == masked)
        else:
            s2, q2, m2 = 2, 3, next_masked_first
        s0, q0 = units[u - 1] if u else (-1, 2)
        mf = qk_mf(q2, s2 & 1, sb ^ 1, m2) + pv_mf(q0, s0 & 1, sb ^ 1)
        k, v = rec_reads((s + 1) & 1, s * 16384)
        rd = k + v
        lo, hi = (16 * j) // n, (16 * (j + 1)) // n
        if n == 3:
            lo, hi = [(0, 6), (6, 11), (11, 16)][j]
        extra = [[x] for x in rd[lo:hi]]
        if u == 0:
            extra[0] = [f"v_add_u32 v2, s{sRd}, v1"] + extra[0]
        dm = kv_rec_dma()
        dlo, dhi = (4 * j) // n, (4 * (j + 1)) // n
        extra += dm[dlo:dhi]
        if u + 2 < len(units):
            s3, q3 = units[u + 2]
            if q3 == masked:
                extra += [[x] for x in cmask_items(q3, s3)]
        elif u + 2 == len(units) and next_masked_first:
            extra += [[x] for x in cmask_items(3, 0)]
        if u == 0 and units[1][1] == masked:
            L += cmask_items(masked, 0)
        tail = None
        if u == 1:
            tail = [f"s_add_u32 s{sRd}, s{sRd}, 32768", f"s_and_b32 s{sRd}, s{sRd}, {RING*16384-1:#x}"]
        if u == len(units) - 1 and loop_tail:
            tail = loop_tail
        body += pack_slot(mf, softmax_items(q, sb), extra, tail)
    entry = {("a", aV + i) for i in range(32)}
    return L + insert_lgkm(body, entry)


def att_last():
    body = []
    k, v = rec_reads(1, 0)
    pre = [f"v_add_u32 v2, s{sRd}, v1"] + k[:2]
    extra = [[x] for x in k[2:]] + [[x] for x in cmask_items(3, 1)]
    sm = softmax_items(3, 0)
    body += pre
    body += pack_slot(pv_mf(2, 1, 1), sm[:6], extra)
    body += pack_slot(qk_mf(3, 1, 1, True), sm[6:], [[x] for x in v])
    body += ["s_nop 1"]
    mf = pv_mf(3, 0, 0)
    body += mf[:7]
    body += pack_slot(mf[7:], softmax_items(3, 1), [])
    body += ["s_nop 1"]
    body += pv_mf(3, 1, 1)
    entry = {("a", aV + i) for i in range(32)}
    return insert_lgkm(body, entry)


def att_epilogue(A, qgs):
    per = []
    for n, qg in enumerate(qgs):
        l = vL + 2 * qg; t = l + 1
        st = [[f"v_add_f32 v{l}, v{l}, v{t}", "s_nop 0"]]
        for x in xlane("v_add_f32", l, t):
            st.append(x + ["s_nop 0"])
        st += [[f"v_cmp_nlt_f32 vcc, v{l}, v6", f"v_rcp_f32 v{l}, v{l}", f"s_or_b32 s{sRedo}, s{sRedo}, vcc_lo", f"s_or_b32 s{sRedo}, s{sRedo}, vcc_hi"]]
        per.append(st)
    staged(A, per)
    for qg in qgs:
        O = vO + 32 * qg; l = vL + 2 * qg
        A(tile_off(qg, sT1, sZoff))
        for u in range(4):
            for k in range(8):
                A(f"v_mul_f32 v{O+8*u+k}, v{O+8*u+k}, v{l}")
            for k in range(4):
                A(f"v_cvt_pk_bf16_f32 v{O+8*u+k}, v{O+8*u+2*k}, v{O+8*u+2*k+1}")
            A(f"buffer_store_dwordx4 {R('v', O+8*u)}, v1, {S4(SZ)}, s{sT1} offen")
            if u < 3:
                A(f"s_add_u32 s{sT1}, s{sT1}, 4096")


def phase_att(A):
    A(f"s_lshl_b32 s{sT0}, s{sW}, 4\nv_and_b32 v2, 15, v0\nv_add_u32 v2, s{sT0}, v2\nv_lshrrev_b32 v3, 4, v0\nv_lshlrev_b32 v3, 2, v3\nv_sub_u32 v2, v2, v3")
    for sig in range(2):
        for b in range(2):
            for r in range(4):
                i = 8 * sig + 4 * b + r
                A(f"v_cmp_le_i32 s[{sMask+2*i}:{sMask+2*i+1}], {32*sig+16*b+r}, v2")
    A(f"v_mov_b32 v7, {NEGBIG:#x}\nv_mov_b32 v6, 0x71800000\ns_mov_b32 s{sRedo}, 0\ns_mov_b32 s{sThr}, 0")
    A(f"s_cmp_lg_u32 s{sP}, 0\ns_cselect_b64 s[34:35], -1, 0")
    for j in range(8):
        A(f"s_or_b64 vcc, s[34:35], s[{sMask+2*j}:{sMask+2*j+1}]\nv_cndmask_b32_e64 v{vCM+j}, v7, 0, vcc")
    A(f"v_add_u32 v2, {(RING-1)*16384}, v1")
    A("L_att_wait:")
    A("s_waitcnt vmcnt(0)\ns_barrier")
    k, v = rec_reads(0, 0)
    A(k); A(v)
    A(rec_reads(1, 0)[1])
    for i in range(8):
        A(f"v_mov_b32 v{vL+i}, 0")
    A(f"s_cmp_lg_u32 s{sThr}, 0\ns_cbranch_scc1 L_att_havemax")
    A("s_waitcnt lgkmcnt(15)\ns_waitcnt lgkmcnt(0)")
    for qg in range(4):
        for b in range(2):
            for d in range(4):
                s = R('v', 16 + 8 * qg + 4 * b)
                c = s if d else (R('v', vCM + 4 * b) if qg == 0 else "0")
                A(f"{MF} {s}, {R('a', aK+16*b+4*d)}, {R('v', vQ+16*qg+4*d)}, {c}")
    A("s_nop 7")
    per = []
    for qg in range(4):
        S = 16 + 8 * qg; m = 8 + 2 * qg; t = m + 1
        st = [[f"v_max3_f32 v{m}, v{S}, v{S+1}, v{S+2}"], [f"v_max3_f32 v{m}, v{m}, v{S+3}, v{S+4}"],
              [f"v_max3_f32 v{m}, v{m}, v{S+5}, v{S+6}"], [f"v_max_f32 v{m}, v{m}, v{S+7}"]]
        st += xlane("v_max_f32", m, t)
        st += [[f"v_sub_f32 v{vNM+4*qg+r}, 0, v{m}" for r in range(4)]]
        per.append(st)
    staged(A, per)
    A("L_att_havemax:")
    for i in range(8):
        A(f"v_mov_b32 v{vP+i}, 0")
    A("s_waitcnt lgkmcnt(0)")
    A(qk_mf(3, 0, 0, False))
    A(f"s_mov_b32 s{sRd}, 0")
    A(f"s_lshl_b32 s{sLoop}, s{sP}, 1\ns_cmp_eq_u32 s{sLoop}, 0\ns_nop 3\ns_cbranch_scc1 L_att_d0")
    tail = [f"s_sub_u32 s{sLoop}, s{sLoop}, 1", f"s_cmp_lg_u32 s{sLoop}, 0"]
    A("L_att_l4:")
    A(att_block([3, 0, 1, 2], None, loop_tail=tail))
    A("s_cbranch_scc1 L_att_l4")
    A("L_att_d0:")
    A(att_block([3, 0, 1, 2], 0))
    A(att_block([3, 1, 2], 1))
    att_epilogue(A, [0, 1])
    A(f"s_lshl_b32 s{sLoop}, s{sP}, 2\ns_sub_u32 s{sLoop}, 28, s{sLoop}\ns_cmp_eq_u32 s{sLoop}, 0\ns_cbranch_scc1 L_att_d2")
    A("L_att_l2:")
    A(att_block([3, 2], None, loop_tail=tail))
    A("s_cbranch_scc1 L_att_l2")
    A("L_att_d2:")
    A(att_block([3, 2], 2, next_masked_first=True, vmn=VMN - 4))
    A(att_last())
    att_epilogue(A, [2, 3])


def fallback(A):
    A(f"s_cmp_lg_u32 s{sThr}, 0\ns_cbranch_scc1 L_A_end")
    A(f"v_mov_b32 v2, {L_VOTE}\ns_lshl_b32 s{sT0}, s{sW}, 2\nv_add_u32 v3, s{sT0}, v2\nv_mov_b32 v4, s{sRedo}")
    A("ds_write_b32 v3, v4\ns_waitcnt lgkmcnt(0)\ns_barrier\nds_read_b128 v[8:11], v2\ns_waitcnt lgkmcnt(0)")
    A(f"v_or_b32 v8, v8, v9\nv_or3_b32 v8, v8, v10, v11\ns_nop 0\nv_readfirstlane_b32 s{sT0}, v8\ns_cmp_eq_u32 s{sT0}, 0\ns_cbranch_scc1 L_A_end")
    A(f"s_mov_b32 s{sThr}, 1\ns_waitcnt vmcnt(0)")
    A(f"s_lshl_b32 s{sT0}, s{sW}, 4\nv_and_b32 v2, 15, v0\nv_add_u32 v2, s{sT0}, v2\nv_lshrrev_b32 v3, 4, v0\nv_lshlrev_b32 v3, 2, v3\nv_sub_u32 v2, v2, v3")
    A(f"s_lshl_b32 s{sT0}, s{sP}, 7\nv_add_u32 v8, s{sT0}, v2\nv_add_u32 v9, 64, v8\ns_sub_u32 s{sT0}, 1920, s{sT0}\nv_add_u32 v10, s{sT0}, v2\nv_add_u32 v11, 64, v10")
    for qg in range(4):
        A(f"v_mov_b32 v{12+qg}, v7")
    A(f"s_mov_b32 s{sDoff}, 0")
    A("L_fb_loop:")
    A(f"s_add_u32 s{sT1}, s{sDoff}, 4096")
    for j in range(8):
        A(f"buffer_load_dwordx4 {R('a', aK+4*j)}, v1, {S4(SKV)}, s{sDoff if j < 4 else sT1} offen offset:{(j&3)*1024}")
    A("s_waitcnt vmcnt(0)")
    for qg in range(4):
        for b in range(2):
            for d in range(4):
                s = R('v', 16 + 8 * qg + 4 * b)
                A(f"{MF} {s}, {R('a', aK+16*b+4*d)}, {R('v', vQ+16*qg+4*d)}, {s if d else '0'}")
    A("s_nop 7")
    for qg in range(4):
        for b in range(2):
            for r in range(4):
                A(f"v_cmp_le_i32 vcc, {16*b+r}, v{8+qg}\ns_nop 1\nv_cndmask_b32 v4, v7, v{16+8*qg+4*b+r}, vcc\nv_max_f32 v{12+qg}, v{12+qg}, v4")
        A(f"v_subrev_u32 v{8+qg}, 32, v{8+qg}")
    A(f"s_add_u32 s{sDoff}, s{sDoff}, 16384\ns_cmp_lt_u32 s{sDoff}, s{SKV+2}\ns_cbranch_scc1 L_fb_loop")
    per = []
    for qg in range(4):
        st = xlane("v_max_f32", 12 + qg, 8 + qg)
        st += [[f"v_sub_f32 v{vNM+4*qg+r}, 0, v{12+qg}" for r in range(4)]]
        per.append(st)
    staged(A, per)
    for i in range(128):
        A(f"v_mov_b32 v{vO+i}, 0")
    A(ring_restart())
    A(f"v_add_u32 v2, {(RING-1)*16384}, v1")
    A("s_branch L_att_wait")


def kernel_A(A):
    A(".p2align 8\n.globl ka_kernel\n.type ka_kernel,@function\nka_kernel:")
    setup_A(A)
    phase_kv(A)
    vm = Vm()
    for T in (13, 14, 15):
        for _ in range(8):
            vm.issue(("d", T))
    phase_q(A, vm)
    phase_abranch(A)
    A("s_barrier")
    wo_relayout(A)
    q_convert(A)
    A("s_waitcnt vmcnt(0)")
    wo_relayout_finish(A, 'a', 128)
    phase_att(A)
    fallback(A)
    A("L_A_end:\ns_endpgm")


def kernel_B(A):
    DEPTH = 6
    A(".p2align 8\n.globl kb_kernel\n.type kb_kernel,@function\nkb_kernel:")
    A("s_cmp_ge_u32 s2, 256\ns_cbranch_scc1 L_B_end")
    A("s_load_dwordx2 s[36:37], s[0:1], 0\ns_load_dwordx4 s[40:43], s[0:1], 72\ns_load_dwordx2 s[44:45], s[0:1], 96")
    A("v_lshrrev_b32 v2, 6, v0\nv_and_b32 v0, 63, v0\nv_readfirstlane_b32 s3, v2\nv_lshlrev_b32 v1, 4, v0")
    A("s_and_b32 s32, s2, 7\ns_lshl_b32 s32, s32, 2\ns_bfe_u32 s34, s2, 0x20003\ns_add_u32 s32, s32, s34\ns_lshr_b32 s33, s2, 5")
    A("s_waitcnt lgkmcnt(0)")
    srd(A, 4, 44, Z_BYTES, WS_Z)
    srd(A, 8, 44, WT_BYTES, WS_WT)
    srd(A, 12, 36, 2048 * 1024)
    srd(A, 16, 40, 1024)
    srd(A, 20, 42, 2048 * 1024)
    A(f"s_mul_i32 s24, s32, {144*4096}\ns_lshl_b32 s34, s3, 12\ns_add_u32 s24, s24, s34")
    A(f"s_mul_i32 s25, s33, {144*4096}\ns_add_u32 s25, s25, s34")
    regs = [('v', i) for i in range(136, 256, 4)] + [('a', i) for i in range(128, 256, 4)]
    fr = lambda k, i: R(*regs[(k % DEPTH) * 8 + i])
    vm = Vm()
    def load(k):
        L = []
        for i in range(4):
            L.append([f"buffer_load_dwordx4 {fr(k, i)}, v1, s[4:7], s24 offen offset:{i*1024}"]); vm.issue(k)
        L[-1].append("s_add_u32 s24, s24, 16384")
        for i in range(4):
            L.append([f"buffer_load_dwordx4 {fr(k, 4+i)}, v1, s[8:11], s25 offen offset:{i*1024}"]); vm.issue(k)
        L[-1].append("s_add_u32 s25, s25, 16384")
        return L
    for k in range(2):
        A(load(k))
    A("v_and_b32 v3, 15, v0\nv_lshrrev_b32 v4, 4, v0\nv_lshlrev_b32 v4, 4, v4\nv_lshl_add_u32 v3, v3, 10, v4")
    A("s_lshl_b32 s26, s32, 2\ns_add_u32 s26, s26, s3\ns_lshl_b32 s26, s26, 14")
    for k in range(16):
        A(f"buffer_load_dwordx4 {R('a', 4*k)}, v3, s[12:15], s26 offen offset:{k*64}"); vm.issue(-1)
    for k in range(16):
        A(f"buffer_load_dwordx4 {R('a', 64+4*k)}, v4, s[16:19], 0 offen offset:{k*64}"); vm.issue(-1)
    for k in range(2, DEPTH - 1):
        A(load(k))
    accB = lambda ct, rt: 8 + 16 * rt + 4 * ct
    accA = lambda ct, rt: 72 + 16 * rt + 4 * ct
    for k in range(36):
        A(f"s_waitcnt vmcnt({vm.need(lambda t: t == k)})")
        ld = load(k + DEPTH - 1) if k + DEPTH - 1 < 36 else []
        acc = accB if k < 32 else accA
        first = k in (0, 32)
        mf = []
        for ct in range(4):
            for rt in range(4):
                r = R('v', acc(ct, rt))
                mf.append(f"{MF} {r}, {fr(k, 4+ct)}, {fr(k, rt)}, {'0' if first else r}")
        A(interleave(mf, place(16, ld, 1, 16) if ld else [[] for _ in range(16)]))
        if k == 2:
            for j in range(16):
                A(f"{MF} v[4:7], {R('a', 64+4*j)}, {R('a', 4*j)}, {'0' if j == 0 else 'v[4:7]'}")
        if k == 3:
            A(f"v_mul_f32 v4, {fbits(-math.log2(math.e)):#x}, v4\nv_exp_f32 v4, v4\ns_nop 0\nv_add_f32 v4, 1.0, v4\nv_rcp_f32 v4, v4")
            A("s_lshl_b32 s26, s3, 8\nv_lshlrev_b32 v2, 2, v0\nv_add_u32 v3, s26, v2\nds_write_b32 v3, v4 offset:49152")
    A("s_waitcnt lgkmcnt(0)\ns_barrier")
    for rt in range(4):
        A(f"ds_read_b32 v{136+rt}, v2 offset:{49152 + rt*256}")
    A("s_waitcnt lgkmcnt(0)")
    for rt in range(4):
        for k in range(16):
            A(f"v_sub_f32 v{72+16*rt+k}, v{72+16*rt+k}, v{8+16*rt+k}")
        for k in range(16):
            A(f"v_fmac_f32 v{8+16*rt+k}, v{136+rt}, v{72+16*rt+k}")
    for rt in range(4):
        A(f"s_sub_u32 s26, s3, {rt+1}\ns_and_b32 s26, s26, 3\ns_cmp_eq_u32 s26, 3\ns_cbranch_scc1 L_B_own{rt}")
        A(f"s_lshl_b32 s26, s26, 12\nv_add_u32 v3, s26, v1")
        for ct in range(4):
            A(f"ds_write_b128 v3, {R('v', accB(ct, rt))} offset:{rt*12288 + ct*1024}")
        A(f"s_branch L_B_nxt{rt}\nL_B_own{rt}:")
        for k in range(16):
            A(f"v_mov_b32 v{140+k}, v{8+16*rt+k}")
        A(f"L_B_nxt{rt}:")
    A("s_mul_i32 s26, s3, 12288\nv_add_u32 v3, s26, v1\ns_waitcnt lgkmcnt(0)\ns_barrier")
    for j in range(12):
        A(f"ds_read_b128 {R('v', 8+4*j)}, v3 offset:{j*1024}")
    A("v_and_b32 v3, 15, v0\nv_lshrrev_b32 v4, 4, v0\nv_lshlrev_b32 v4, 4, v4\nv_lshl_add_u32 v3, v3, 10, v4")
    A("s_lshl_b32 s26, s32, 2\ns_add_u32 s26, s26, s3\ns_lshl_b32 s26, s26, 14\ns_lshl_b32 s27, s33, 7\ns_add_u32 s26, s26, s27")
    for s in range(3):
        A(f"s_waitcnt lgkmcnt({8-4*s})")
        for k in range(16):
            A(f"v_add_f32 v{140+k}, v{140+k}, v{8+16*s+k}")
    for k in range(8):
        A(f"v_cvt_pk_bf16_f32 v{140+k}, v{140+2*k}, v{140+2*k+1}")
    A("buffer_store_dwordx4 v[140:143], v3, s[20:23], s26 offen\nbuffer_store_dwordx4 v[144:147], v3, s[20:23], s26 offen offset:64")
    A("L_B_end:\ns_endpgm")


def desc(name):
    return f""".p2align 6
.amdhsa_kernel {name}
  .amdhsa_next_free_vgpr 512
  .amdhsa_next_free_sgpr 102
  .amdhsa_accum_offset 256
  .amdhsa_group_segment_fixed_size 0
  .amdhsa_kernarg_size 104
  .amdhsa_user_sgpr_count 2
  .amdhsa_user_sgpr_kernarg_segment_ptr 1
  .amdhsa_system_sgpr_workgroup_id_x 1
.end_amdhsa_kernel
"""


def check_scc(lines):
    errs = []
    for i, ln in enumerate(lines):
        if ln.startswith("s_cbranch_scc"):
            k = i - 1
            while True:
                p = lines[k]
                if p.startswith("s_cmp"):
                    break
                if p.endswith(":") or (p.startswith("s_") and not p.startswith(("s_waitcnt", "s_nop", "s_mov", "s_barrier", "s_cselect", "s_mul_i32"))):
                    errs.append(f"SCC clobber before [{i}] {ln}: {p}"); break
                k -= 1
    for e in errs: print(e)
    return errs


def build():
    A = Asm(); kernel_A(A)
    B = Asm(); kernel_B(B)
    errs = check_hazards(A.lines) + check_hazards(B.lines)
    errs += check_waits(A.lines) + check_waits(B.lines) + check_scc(A.lines) + check_scc(B.lines)
    hdr = ("; gated_mix: generated by dev/gen.py\n"
           "; @launch kernel=ka_kernel grid=(256,1,1) block=(256,1,1) lds=163840\n"
           "; @launch kernel=kb_kernel grid=(256,1,1) block=(256,1,1) lds=51200\n"
           '.amdgcn_target "amdgcn-amd-amdhsa--gfx950"\n.text\n')
    txt = hdr + A.text() + B.text() + '.section .rodata,"a"\n' + desc("ka_kernel") + desc("kb_kernel")
    return txt, errs


if __name__ == "__main__":
    txt, errs = build()
    out = sys.argv[1] if len(sys.argv) > 1 else f"cdna_kernels/{NAME}.s"
    open(out, "w").write(txt)
    print("wrote", out, len(txt), "bytes;", len(errs), "check errors")
```
